```python
import torch

def _softmax(x, axis=-1):
    return torch.softmax(x, dim=axis)
def _gelu(x):
    return torch.nn.functional.gelu(x, approximate="tanh")
def _silu(x):
    return torch.nn.functional.silu(x)
def _sigmoid(x):
    return torch.sigmoid(x)
def _layernorm(x, axis=-1, eps=1e-5):
    m = x.mean(dim=axis, keepdim=True)
    v = x.var(dim=axis, keepdim=True, unbiased=False)
    return (x - m) / torch.sqrt(v + eps)
def _scatter_add(tgt, idx, src, axis=0):
    return tgt.clone().index_add_(axis, idx, src)
def _segment_sum(src, seg, n):
    out = torch.zeros((n,) + src.shape[1:], dtype=src.dtype)
    return out.index_add_(0, seg, src)
def _pad(x, pw):
    flat = tuple(v for pair in reversed(pw) for v in pair)
    return torch.nn.functional.pad(x, flat)

kernel_name = 'standalone__gqa_softmax__decode'

def setup_inputs():

    _w = (lambda a: (lambda t: t.to(torch.bfloat16) if t.is_floating_point() else t)(torch.as_tensor(a)))
    B, Hq, Hkv, Sq, Sk, D = 2, 32, 16, 1, 8192, 128
    return {
        "q": _w((lambda *s: torch.randn(*s, dtype=torch.bfloat16) * 0.8)(B, Hq, Sq, D)),
        "k": _w((lambda *s: torch.randn(*s, dtype=torch.bfloat16) * 0.8)(B, Hkv, Sk, D)),
        "v": _w((lambda *s: torch.randn(*s, dtype=torch.bfloat16) * 0.05)(B, Hkv, Sk, D)),
    }

def reference(q, k, v):
    B, Hq, Sq, D = q.shape
    Hkv = k.shape[1]
    rep = Hq // Hkv
    k = (lambda x, n, axis: torch.repeat_interleave(x, n, dim=axis))(k, rep, axis=1)
    v = (lambda x, n, axis: torch.repeat_interleave(x, n, dim=axis))(v, rep, axis=1)
    scale = D ** -0.5
    scores = torch.einsum("bhqd,bhkd->bhqk", q, k) * scale
    p = _softmax(scores, axis=-1)
    return torch.einsum("bhqk,bhkd->bhqd", p, v)
```

```python
import argparse, struct, math

def f2u(x):
    return struct.unpack("<I", struct.pack("<f", x))[0]

HEADER = """; Kernarg layout for this problem (48 bytes, ptrs only, base s[0:1]):
"""

class Gen:
    def __init__(self, a):
        self.a = a
        self.lines = []
        self.vm = []
    def e(self, s):
        self.lines.append("    " + s)
    def label(self, s):
        self.lines.append(s + ":")
    def c(self, s):
        self.lines.append("    ; " + s)
    def vmem(self, name, s):
        self.vm.append(name)
        self.e(s)
    def wait_vm(self, name):
        idx = self.vm.index(name)
        n = len(self.vm) - 1 - idx
        n = min(n, 63)
        self.e(f"s_waitcnt vmcnt({n})")

def gen(a):
    NW = a.nw
    NSPLIT = 8
    NWG = 32 * NSPLIT
    KPWG = 8192 // NSPLIT
    KPW = KPWG // NW
    NL = KPW // 4
    NS = NL // 2
    VMAX = 512 // (NW // 4) if NW >= 8 else 256
    VMAX = min(VMAX, 256)
    pol = a.pol
    g = Gen(a)
    e = g.e
    vLane, vOffK, vOffV, vT = 0, 1, 2, 3
    vBqE, vBqO = 4, 8
    vMask = 12
    vAcc = 16
    vD0, vD1 = 20, 24
    vS = 28
    vM = vS + NS
    vL = vM + 1
    vT2 = vM + 2
    vCnt = vM + 3
    vData = (vM + 4 + 3) // 4 * 4
    nslots = (VMAX - vData) // 4
    nslots = min(nslots, a.depth if a.depth else nslots, 2 * NL)
    assert nslots >= NL, "need all K resident in this version"
    NV0 = nslots - NL
    def slot(i):
        return vData + 4 * i
    vtop = vData + 4 * nslots
    sQ, sK, sV, sO, sDbg, sWs = 16, 20, 24, 28, 32, 36
    sWave, sPair, sSplit, sBase, sTmp, sC = 40, 41, 42, 43, 44, 45
    sRole = 46
    sOff = 48
    LDS_ML = NW * 1024
    LDS_BYTES = LDS_ML + 2 * NW * 8

    out = []
    out.append(HEADER + f"; @launch grid=({NWG},1,1) block=({NW*64},1,1) lds={LDS_BYTES}")
    out.append('.amdgcn_target "amdgcn-amd-amdhsa--gfx950"')
    out.append(".text")
    name = "standalone__gqa_softmax__decode_kernel"
    out.append(f".globl {name}")
    out.append(".p2align 8")
    out.append(f".type {name},@function")
    out.append(f"{name}:")

    e(f"s_cmp_ge_u32 s2, {NWG}")
    e("s_cbranch_scc1 L_end")
    e("s_load_dwordx4 s[4:7], s[0:1], 0")
    e("s_load_dwordx4 s[8:11], s[0:1], 16")
    e("s_load_dwordx4 s[12:15], s[0:1], 32")
    e(f"v_lshrrev_b32 v{vT}, 6, v0")
    e(f"v_and_b32 v{vLane}, 63, v0")
    e(f"v_readfirstlane_b32 s{sWave}, v{vT}")
    g.c("K lane offset = ((lane>>2)&3)*256 + (lane>>4)*64 + (lane&3)*16")
    e(f"v_bfe_u32 v{vOffK}, v{vLane}, 2, 2")
    e(f"v_lshlrev_b32 v{vOffK}, 8, v{vOffK}")
    e(f"v_lshrrev_b32 v{vT}, 4, v{vLane}")
    e(f"v_lshlrev_b32 v{vT}, 6, v{vT}")
    e(f"v_and_b32 v{vT2}, 3, v{vLane}")
    e(f"v_lshl_add_u32 v{vT}, v{vT2}, 4, v{vT}")
    e(f"v_add_u32 v{vOffK}, v{vOffK}, v{vT}")
    e(f"v_lshlrev_b32 v{vOffV}, 4, v{vLane}")
    g.c("Q lane offset = ((lane>>3)&1)*256 + g*64 + t*16")
    e(f"v_bfe_u32 v{vT2}, v{vLane}, 3, 1")
    e(f"v_lshl_add_u32 v{vT}, v{vT2}, 8, v{vT}")
    if a.map == 0:
        e(f"s_lshr_b32 s{sPair}, s2, 3")
        e(f"s_and_b32 s{sSplit}, s2, 7")
    else:
        e(f"s_and_b32 s{sPair}, s2, 31")
        e(f"s_lshr_b32 s{sSplit}, s2, 5")
    e(f"s_lshl_b32 s{sBase}, s{sPair}, 21")
    e(f"s_lshl_b32 s{sTmp}, s{sSplit}, {int(math.log2(KPWG*256))}")
    e(f"s_add_u32 s{sBase}, s{sBase}, s{sTmp}")
    if a.inter:
        wstride, lstride = 1024 * a.inter, None
    else:
        wstride = KPW * 256
    e(f"s_mul_i32 s{sTmp}, s{sWave}, {wstride}")
    e(f"s_add_u32 s{sBase}, s{sBase}, s{sTmp}")
    def loff(j):
        if a.inter:
            return (j // a.inter) * (NW * a.inter * 1024) + (j % a.inter) * 1024
        return j * 1024
    bases = sorted(set(loff(j) & ~4095 for j in range(NL)))
    assert sOff + len(bases) <= 100
    for i, b in enumerate(bases):
        e(f"s_add_u32 s{sOff+i}, s{sBase}, {b}")
    def addr(j):
        o = loff(j)
        i = bases.index(o & ~4095)
        return f"s{sOff+i} offen offset:{o & 4095}"
    e(f"s_lshl_b32 s{sTmp}, s{sPair}, 9")
    e(f"s_mov_b32 s{sC}, {f2u(128 ** -0.5 * math.log2(math.e))}")
    for s in (sQ, sK, sV, sO, sDbg, sWs):
        e(f"s_mov_b32 s{s+3}, 0x20000")
    e(f"s_mov_b32 s{sQ+2}, 16384")
    e(f"s_mov_b32 s{sK+2}, 0x4000000")
    e(f"s_mov_b32 s{sV+2}, 0x4000000")
    e(f"s_mov_b32 s{sO+2}, 16384")
    e(f"s_mov_b32 s{sDbg+2}, 256")
    e(f"s_mov_b32 s{sWs+2}, 0x100000")
    g.c("role: consumer wave = split 0 and wave < 4")
    e(f"s_cmp_lt_u32 s{sWave}, 4")
    e(f"s_cselect_b32 s{sRole}, 1, 0")
    e(f"s_cmp_eq_u32 s{sSplit}, 0")
    e(f"s_cselect_b32 s{sRole}, s{sRole}, 0")
    e("s_waitcnt lgkmcnt(0)")
    e(f"s_mov_b32 s{sQ}, s4");  e(f"s_mov_b32 s{sQ+1}, s5")
    e(f"s_mov_b32 s{sK}, s6");  e(f"s_mov_b32 s{sK+1}, s7")
    e(f"s_mov_b32 s{sV}, s8");  e(f"s_mov_b32 s{sV+1}, s9")
    e(f"s_mov_b32 s{sO}, s10"); e(f"s_mov_b32 s{sO+1}, s11")
    e(f"s_mov_b32 s{sDbg}, s12"); e(f"s_mov_b32 s{sDbg+1}, s13")
    e(f"s_mov_b32 s{sWs}, s14"); e(f"s_mov_b32 s{sWs+1}, s15")
    e(f"s_lshl_b32 s4, s{sPair}, 3")
    e(f"s_add_u32 s4, s4, s{sSplit}")
    e("s_lshl_b32 s4, s4, 12")
    e(f"s_lshl_b32 s5, s{sPair}, 2")
    g.c("last wave of a producer workgroup: mark the hand-off slot empty, then count")
    e(f"s_cmp_lg_u32 s{sWave}, {NW-1}")
    e("s_cbranch_scc1 L_noclear")
    e(f"s_cmp_eq_u32 s{sSplit}, 0")
    e("s_cbranch_scc1 L_noclear")
    for r in range(4):
        e(f"v_mov_b32 v{vD0+r}, -1")
    e(f"v_mov_b32 v{vD1}, 1")
    for r in range(4):
        e(f"buffer_store_dwordx4 v[{vD0}:{vD0+3}], v{vOffV}, s[{sWs}:{sWs+3}], s4 offen offset:{r*1024} sc1")
    e("s_waitcnt vmcnt(0)")
    e("s_mov_b64 exec, 1")
    e(f"buffer_atomic_add v{vD1}, off, s[{sDbg}:{sDbg+3}], s5")
    e("s_mov_b64 exec, -1")
    g.label("L_noclear")
    g.vmem("Q", f"buffer_load_dwordx4 v[{vBqE}:{vBqE+3}], v{vT}, s[{sQ}:{sQ+3}], s{sTmp} offen")
    vslot = {}
    for j in range(NL):
        r = slot(j)
        g.vmem(f"K{j}", f"buffer_load_dwordx4 v[{r}:{r+3}], v{vOffK}, s[{sK}:{sK+3}], {addr(j)}{pol}")
    def issue_v(j, r):
        vslot[j] = r
        g.vmem(f"V{j}", f"buffer_load_dwordx4 v[{r}:{r+3}], v{vOffV}, s[{sV}:{sV+3}], {addr(j)}{pol}")
    for j in range(NV0):
        issue_v(j, slot(NL + j))
    g.c("P-operand lane masks: i'=lane&7 ; mask_r = (i'>>1==r) ? (i'&1 ? 0xffff0000 : 0xffff) : 0")
    e(f"v_and_b32 v{vT}, 1, v{vLane}")
    e(f"v_lshlrev_b32 v{vT}, 4, v{vT}")
    e(f"v_mov_b32 v{vT2}, 0xffff")
    e(f"v_lshlrev_b32 v{vT}, v{vT}, v{vT2}")
    e(f"v_bfe_u32 v{vT2}, v{vLane}, 1, 2")
    for r in range(4):
        e(f"v_cmp_eq_u32 vcc, {r}, v{vT2}")
        e("s_nop 1")
        e(f"v_cndmask_b32 v{vMask+r}, 0, v{vT}, vcc")
    for r in range(4):
        e(f"v_mov_b32 v{vAcc+r}, 0")
    e("s_mov_b32 vcc_lo, 0xf0f0f0f0")
    e("s_mov_b32 vcc_hi, 0xf0f0f0f0")
    g.wait_vm("Q")
    for r in range(4):
        e(f"v_cndmask_b32 v{vBqO+r}, 0, v{vBqE+r}, vcc")
    e("s_not_b64 vcc, vcc")
    for r in range(4):
        e(f"v_cndmask_b32 v{vBqE+r}, 0, v{vBqE+r}, vcc")
    e("s_nop 1")
    def reduce_tile(jj):
        D = vD0 if jj % 2 == 0 else vD1
        s = vS + jj
        dpp = lambda u: f"quad_perm:[{u},{u},{u},{u}] row_mask:0xf bank_mask:0xf"
        e(f"v_mov_b32_dpp v{s}, v{D} {dpp(0)}")
        for u in range(1, 4):
            e(f"v_add_f32_dpp v{s}, v{D+u}, v{s} {dpp(u)}")
    nextv = NV0
    for jj in range(NS):
        D = vD0 if jj % 2 == 0 else vD1
        for x in range(2):
            j = 2 * jj + x
            r = slot(j)
            g.wait_vm(f"K{j}")
            B = vBqE if x == 0 else vBqO
            C = "0" if x == 0 else f"v[{D}:{D+3}]"
            e(f"v_mfma_f32_16x16x32_bf16 v[{D}:{D+3}], v[{r}:{r+3}], v[{B}:{B+3}], {C}")
            if nextv < NL:
                issue_v(nextv, r)
                nextv += 1
        if jj > 0:
            e("s_nop 3")
            reduce_tile(jj - 1)
    e("s_nop 7")
    reduce_tile(NS - 1)
    assert nextv == NL
    g.c("consumer waves: fetch the count of cleared slots")
    e(f"s_cmp_eq_u32 s{sRole}, 0")
    e("s_cbranch_scc1 L_nocnt")
    e(f"buffer_load_dword v{vCnt}, off, s[{sDbg}:{sDbg+3}], s5 sc1")
    g.label("L_nocnt")
    e(f"v_max_f32 v{vM}, v{vS}, v{vS+1}")
    for k in range(2, NS, 2):
        e(f"v_max3_f32 v{vM}, v{vS+k}, v{vS+k+1}, v{vM}")
    def allred(op, v):
        e("s_nop 1")
        e(f"v_{op}_f32_dpp v{v}, v{v}, v{v} row_half_mirror row_mask:0xf bank_mask:0xf")
        e(f"v_mov_b32 v{vT}, v{v}")
        e("s_nop 1")
        e(f"v_permlane16_swap_b32 v{v}, v{vT}")
        e(f"v_{op}_f32 v{v}, v{v}, v{vT}")
        e(f"v_mov_b32 v{vT}, v{v}")
        e("s_nop 1")
        e(f"v_permlane32_swap_b32 v{v}, v{vT}")
        e(f"v_{op}_f32 v{v}, v{v}, v{vT}")
    allred("max", vM)
    e(f"v_mul_f32 v{vM}, s{sC}, v{vM}")
    for k in range(NS):
        e(f"v_fma_f32 v{vS+k}, v{vS+k}, s{sC}, -v{vM}")
    for k in range(NS):
        e(f"v_exp_f32 v{vS+k}, v{vS+k}")
    e("s_nop 0")
    e(f"v_add_f32 v{vL}, v{vS}, v{vS+1}")
    for k in range(2, NS):
        e(f"v_add_f32 v{vL}, v{vL}, v{vS+k}")
    for k in range(NS):
        e(f"v_cvt_pk_bf16_f32 v{vS+k}, v{vS+k}, v{vS+k}")
    allred("add", vL)
    g.c("publish (m, l) of this wave to LDS: lanes 0 and 8")
    e(f"v_bfe_u32 v{vT}, v{vLane}, 3, 1")
    e(f"v_mul_u32_u24 v{vT}, {NW*8}, v{vT}")
    e(f"s_lshl_b32 s6, s{sWave}, 3")
    e(f"v_add_u32 v{vT}, s6, v{vT}")
    e("s_mov_b64 exec, 0x101")
    assert vM % 2 == 0 and vL == vM + 1
    e(f"ds_write_b64 v{vT}, v[{vM}:{vL}] offset:{LDS_ML}")
    e("s_mov_b64 exec, -1")
    g.c("LDS address for the O partial: wave*1024 + (lane>>5)*512 + (lane&15)*32 + ((lane>>4)&1)*16")
    e(f"v_lshrrev_b32 v{vOffK}, 5, v{vLane}")
    e(f"v_lshlrev_b32 v{vOffK}, 9, v{vOffK}")
    e(f"v_and_b32 v{vT}, 15, v{vLane}")
    e(f"v_lshl_add_u32 v{vOffK}, v{vT}, 5, v{vOffK}")
    e(f"v_bfe_u32 v{vT}, v{vLane}, 4, 1")
    e(f"v_lshl_add_u32 v{vOffK}, v{vT}, 4, v{vOffK}")
    e(f"s_lshl_b32 s6, s{sWave}, 10")
    e(f"v_add_u32 v{vOffK}, s6, v{vOffK}")
    full = "row_mask:0xf bank_mask:0xf bound_ctrl:0"
    for j in range(NL):
        jj, x0 = j // 2, j % 2
        A = vD0 if j % 2 == 0 else vD1
        p = vS + jj
        for r in range(4):
            own = (r >> 1) == x0
            if own:
                e(f"v_and_b32 v{A+r}, v{p}, v{vMask+r}")
            else:
                sh = "row_shr:4" if x0 == 0 else "row_shl:4"
                e(f"v_and_b32_dpp v{A+r}, v{p}, v{vMask+r} {sh} {full}")
        g.wait_vm(f"V{j}")
        e("s_nop 0")
        r = vslot[j]
        e(f"v_mfma_f32_16x16x32_bf16 v[{vAcc}:{vAcc+3}], v[{A}:{A+3}], v[{r}:{r+3}], v[{vAcc}:{vAcc+3}]")
    e("s_nop 7")
    e(f"ds_write_b128 v{vOffK}, v[{vAcc}:{vAcc+3}]")
    R = vData
    e(f"s_cmp_eq_u32 s{sRole}, 0")
    e("s_cbranch_scc1 L_bar")
    e("s_waitcnt vmcnt(0)")
    e(f"s_mov_b32 s7, 0x40000")
    g.label("L_cnt")
    e(f"v_readfirstlane_b32 s6, v{vCnt}")
    e(f"s_cmp_ge_u32 s6, {NSPLIT-1}")
    e("s_cbranch_scc1 L_poll0")
    e(f"buffer_load_dword v{vCnt}, off, s[{sDbg}:{sDbg+3}], s5 sc1")
    e("s_sub_u32 s7, s7, 1")
    e("s_cmp_eq_u32 s7, 0")
    e("s_waitcnt vmcnt(0)")
    e("s_cbranch_scc0 L_cnt")
    e("s_branch L_bar")
    g.label("L_poll0")
    e(f"s_lshl_b32 s6, s{sWave}, 10")
    e("s_add_u32 s8, s4, s6")
    for s in range(1, NSPLIT):
        e(f"s_add_u32 s{8+s}, s8, {s*4096}")
    g.label("L_poll")
    for s in range(1, NSPLIT):
        e(f"buffer_load_dwordx4 v[{R+4*s}:{R+4*s+3}], v{vOffV}, s[{sWs}:{sWs+3}], s{8+s} offen sc1")
    e("s_sub_u32 s7, s7, 1")
    e("s_waitcnt vmcnt(6)")
    e(f"v_max3_u32 v{vT}, v{R+4}, v{R+5}, v{R+6}")
    for s in range(2, NSPLIT):
        e(f"s_waitcnt vmcnt({NSPLIT-1-s})")
        e(f"v_max3_u32 v{vT}, v{R+4*s}, v{R+4*s+1}, v{vT}")
        e(f"v_max_u32 v{vT}, v{R+4*s+2}, v{vT}")
    e(f"v_cmp_eq_u32 vcc, -1, v{vT}")
    e("s_cmp_eq_u32 s7, 0")
    e("s_cbranch_scc1 L_bar")
    e("s_cbranch_vccnz L_poll")
    g.label("L_bar")
    e("s_waitcnt lgkmcnt(0)")
    e("s_barrier")
    e(f"s_cmp_ge_u32 s{sWave}, 4")
    e("s_cbranch_scc1 L_end")
    Ow = R + 32
    assert Ow + NW <= vtop
    e(f"v_and_b32 v{vT}, {NW-1}, v{vLane}")
    e(f"v_lshlrev_b32 v{vT}, 3, v{vT}")
    e(f"s_lshr_b32 s6, s{sWave}, 1")
    e(f"s_mul_i32 s6, s6, {NW*8}")
    e(f"v_add_u32 v{vT}, s6, v{vT}")
    e(f"ds_read_b64 v[{vM}:{vL}], v{vT} offset:{LDS_ML}")
    e(f"s_lshl_b32 s6, s{sWave}, 8")
    e(f"v_lshl_add_u32 v{vT}, v{vLane}, 2, s6")
    for w in range(NW):
        e(f"ds_read_b32 v{Ow+w}, v{vT} offset:{w*1024}")
    rors = [8, 4, 2, 1] if NW == 16 else ([4, 2, 1] if NW == 8 else [2, 1])
    vMx, vF, vLs, vO = R + 1, vT2, R + 2, R
    e(f"s_waitcnt lgkmcnt({min(NW,15)})")
    e(f"v_mov_b32 v{vMx}, v{vM}")
    for rr in rors:
        e("s_nop 1")
        e(f"v_max_f32_dpp v{vMx}, v{vMx}, v{vMx} row_ror:{rr} row_mask:0xf bank_mask:0xf")
    e(f"v_sub_f32 v{vF}, v{vM}, v{vMx}")
    e(f"v_exp_f32 v{vF}, v{vF}")
    e("s_nop 0")
    e(f"v_mul_f32 v{vLs}, v{vL}, v{vF}")
    e("s_waitcnt lgkmcnt(0)")
    e(f"v_mul_f32_dpp v{vO}, v{vF}, v{Ow} row_newbcast:0 row_mask:0xf bank_mask:0xf")
    k = 0
    for w in range(1, NW):
        e(f"v_fmac_f32_dpp v{vO}, v{vF}, v{Ow+w} row_newbcast:{w} row_mask:0xf bank_mask:0xf")
        if w % 2 == 0 and k < len(rors):
            e(f"v_add_f32_dpp v{vLs}, v{vLs}, v{vLs} row_ror:{rors[k]} row_mask:0xf bank_mask:0xf")
            k += 1
    while k < len(rors):
        e("s_nop 1")
        e(f"v_add_f32_dpp v{vLs}, v{vLs}, v{vLs} row_ror:{rors[k]} row_mask:0xf bank_mask:0xf")
        k += 1
    e(f"s_cmp_eq_u32 s{sRole}, 0")
    e("s_cbranch_scc0 L_final")
    g.c("producer: publish {O, M, L, 0}; keep every word distinct from the empty mark")
    e(f"v_min_u32 v{R}, -2, v{R}")
    e(f"v_min_u32 v{R+1}, -2, v{R+1}")
    e(f"v_min_u32 v{R+2}, -2, v{R+2}")
    e(f"v_mov_b32 v{R+3}, 0")
    e(f"s_lshl_b32 s6, s{sWave}, 10")
    e("s_add_u32 s6, s4, s6")
    e(f"buffer_store_dwordx4 v[{R}:{R+3}], v{vOffV}, s[{sWs}:{sWs+3}], s6 offen sc1")
    e("s_endpgm")
    g.label("L_final")
    e(f"v_max3_f32 v{vM}, v{R+1}, v{R+5}, v{R+9}")
    e(f"v_max3_f32 v{vT}, v{R+13}, v{R+17}, v{R+21}")
    e(f"v_max3_f32 v{vM}, v{R+25}, v{R+29}, v{vM}")
    e(f"v_max_f32 v{vM}, v{vM}, v{vT}")
    for s in range(NSPLIT):
        e(f"v_sub_f32 v{R+4*s+1}, v{R+4*s+1}, v{vM}")
    for s in range(NSPLIT):
        e(f"v_exp_f32 v{R+4*s+1}, v{R+4*s+1}")
    e("s_nop 0")
    e(f"v_mul_f32 v{vL}, v{R+1}, v{R+2}")
    e(f"v_mul_f32 v{vT}, v{R+1}, v{R}")
    for s in range(1, NSPLIT):
        e(f"v_fmac_f32 v{vL}, v{R+4*s+1}, v{R+4*s+2}")
        e(f"v_fmac_f32 v{vT}, v{R+4*s+1}, v{R+4*s}")
    e(f"v_rcp_f32 v{vL}, v{vL}")
    e(f"s_lshl_b32 s6, s{sWave}, 7")
    e(f"s_add_u32 s6, s6, s{sTmp}")
    e(f"v_lshlrev_b32 v{vT2}, 1, v{vLane}")
    e(f"v_mul_f32 v{vT}, v{vT}, v{vL}")
    e(f"v_cvt_pk_bf16_f32 v{vT}, v{vT}, v{vT}")
    e(f"buffer_store_short v{vT}, v{vT2}, s[{sO}:{sO+3}], s6 offen")
    g.label("L_end")
    e("s_endpgm")

    out += g.lines
    nfv = vtop
    out.append('.section .rodata,"a"')
    out.append(".p2align 6")
    out.append(f".amdhsa_kernel {name}")
    out.append(f"  .amdhsa_next_free_vgpr {nfv}")
    out.append(f"  .amdhsa_next_free_sgpr {max(sOff + len(bases), 64)}")
    out.append(f"  .amdhsa_accum_offset {(nfv + 3)//4*4}")
    out.append("  .amdhsa_group_segment_fixed_size 0")
    out.append("  .amdhsa_kernarg_size 48")
    out.append("  .amdhsa_user_sgpr_count 2")
    out.append("  .amdhsa_user_sgpr_kernarg_segment_ptr 1")
    out.append("  .amdhsa_system_sgpr_workgroup_id_x 1")
    out.append("  .amdhsa_float_denorm_mode_32 3")
    out.append(".end_amdhsa_kernel")
    return "\n".join(out) + "\n"

if __name__ == "__main__":
    ap = argparse.ArgumentParser()
    ap.add_argument("--nw", type=int, default=16)
    ap.add_argument("--pol", default="")
    ap.add_argument("--map", type=int, default=0)
    ap.add_argument("--inter", type=int, default=0)
    ap.add_argument("--depth", type=int, default=0)
    ap.add_argument("-o", default="standalone__gqa_softmax__decode.s")
    a = ap.parse_args()
    if a.pol:
        a.pol = " " + a.pol.replace("+", " ")
    open(a.o, "w").write(gen(a))
```

```python
import argparse, struct, math

def f2u(x):
    return struct.unpack("<I", struct.pack("<f", x))[0]

HEADER = """; Kernarg layout for this problem (48 bytes, ptrs only, base s[0:1]):
"""

class Gen:
    def __init__(self, a):
        self.a = a
        self.lines = []
        self.vm = []
    def e(self, s):
        self.lines.append("    " + s)
    def label(self, s):
        self.lines.append(s + ":")
    def c(self, s):
        self.lines.append("    ; " + s)
    def vmem(self, name, s):
        self.vm.append(name)
        self.e(s)
    def stamp(self, i):
        if self.a.diag:
            self.e(f"s_memrealtime s[{80+2*i}:{81+2*i}]")
            self.e("s_waitcnt lgkmcnt(0)")
    def dump(self, sWave, NWT, sWs):
        if not self.a.diag:
            return
        e = self.e
        self.stamp(5)
        e("s_getreg_b32 s92, hwreg(HW_REG_XCC_ID)")
        e("s_getreg_b32 s93, hwreg(HW_REG_HW_ID)")
        e(f"s_mul_i32 s94, s2, {NWT}")
        e(f"s_add_u32 s94, s94, s{sWave}")
        e("s_lshl_b32 s94, s94, 5")
        e("s_add_u32 s94, s94, 0x100000")
        for i in range(6):
            e(f"v_mov_b32 v{4+i}, s{80+2*i}")
        e("v_mov_b32 v10, s92")
        e("v_mov_b32 v11, s93")
        e("s_mov_b64 exec, 1")
        e(f"buffer_store_dwordx4 v[4:7], off, s[{sWs}:{sWs+3}], s94")
        e(f"buffer_store_dwordx4 v[8:11], off, s[{sWs}:{sWs+3}], s94 offset:16")
    def wait_vm(self, name):
        idx = self.vm.index(name)
        n = len(self.vm) - 1 - idx
        n = min(n, 63)
        self.e(f"s_waitcnt vmcnt({n})")

def gen(a):
    NW = a.nw
    NWT = NW + 1
    NSPLIT = 8
    NWG = 32 * NSPLIT
    KPWG = 8192 // NSPLIT
    KPW = KPWG // NW
    NL = KPW // 4
    NS = NL // 2
    pol = a.pol
    D = a.depth
    g = Gen(a)
    e = g.e
    vLane, vOffK, vOffV, vT = 0, 1, 2, 3
    vBqE, vBqO = 4, 8
    vMask = 12
    vAcc = 16
    vD0, vD1 = 20, 24
    vS = 28
    vM = vS + NS
    vL = vM + 1
    vT2 = vM + 2
    vCnt = vM + 3
    vData = (vM + 4 + 3) // 4 * 4
    vtop = vData + 4 * D
    assert vtop <= 256
    assert 4 * D >= 32 + NW
    def slot(i):
        return vData + 4 * (i % D)
    sQ, sK, sV, sO, sDbg, sWs = 16, 20, 24, 28, 32, 36
    sWave, sPair, sSplit, sBase, sTmp, sC = 40, 41, 42, 43, 44, 45
    sOff = 48
    LDS_ML = NW * 1024
    LDS_BYTES = max(LDS_ML + 2 * NW * 8, a.lds)

    out = []
    out.append(HEADER + f"; @launch grid=({NWG},1,1) block=({NWT*64},1,1) lds={LDS_BYTES}")
    out.append('.amdgcn_target "amdgcn-amd-amdhsa--gfx950"')
    out.append(".text")
    name = "standalone__gqa_softmax__decode_kernel"
    out.append(f".globl {name}")
    out.append(".p2align 8")
    out.append(f".type {name},@function")
    out.append(f"{name}:")

    e(f"s_cmp_ge_u32 s2, {NWG}")
    e("s_cbranch_scc1 L_end")
    g.stamp(0)
    e("s_load_dwordx4 s[4:7], s[0:1], 0")
    e("s_load_dwordx4 s[8:11], s[0:1], 16")
    e("s_load_dwordx4 s[12:15], s[0:1], 32")
    e(f"v_lshrrev_b32 v{vT}, 6, v0")
    e(f"v_and_b32 v{vLane}, 63, v0")
    e(f"v_readfirstlane_b32 s{sWave}, v{vT}")
    g.c("K lane offset = ((lane>>2)&3)*256 + (lane>>4)*64 + (lane&3)*16")
    e(f"v_bfe_u32 v{vOffK}, v{vLane}, 2, 2")
    e(f"v_lshlrev_b32 v{vOffK}, 8, v{vOffK}")
    e(f"v_lshrrev_b32 v{vT}, 4, v{vLane}")
    e(f"v_lshlrev_b32 v{vT}, 6, v{vT}")
    e(f"v_and_b32 v{vT2}, 3, v{vLane}")
    e(f"v_lshl_add_u32 v{vT}, v{vT2}, 4, v{vT}")
    e(f"v_add_u32 v{vOffK}, v{vOffK}, v{vT}")
    e(f"v_lshlrev_b32 v{vOffV}, 4, v{vLane}")
    g.c("Q lane offset = ((lane>>3)&1)*256 + g*64 + t*16")
    e(f"v_bfe_u32 v{vT2}, v{vLane}, 3, 1")
    e(f"v_lshl_add_u32 v{vT}, v{vT2}, 8, v{vT}")
    if a.map == 0:
        e(f"s_lshr_b32 s{sPair}, s2, 3")
        e(f"s_and_b32 s{sSplit}, s2, 7")
    else:
        e(f"s_and_b32 s{sPair}, s2, 31")
        e(f"s_lshr_b32 s{sSplit}, s2, 5")
    e(f"s_lshl_b32 s{sBase}, s{sPair}, 21")
    I = a.inter
    if a.joint:
        sstride = NW * I * 1024
        gstride = NSPLIT * sstride
    else:
        sstride = KPWG * 256
        gstride = NW * I * 1024
    e(f"s_mul_i32 s{sTmp}, s{sSplit}, {sstride}")
    e(f"s_add_u32 s{sBase}, s{sBase}, s{sTmp}")
    e(f"s_mul_i32 s{sTmp}, s{sWave}, {I*1024}")
    e(f"s_add_u32 s{sBase}, s{sBase}, s{sTmp}")
    def loff(j):
        return (j // I) * gstride + (j % I) * 1024
    bases = sorted(set(loff(j) & ~4095 for j in range(NL)))
    assert sOff + len(bases) <= 80
    for i, b in enumerate(bases):
        e(f"s_add_u32 s{sOff+i}, s{sBase}, {b}")
    def addr(j):
        o = loff(j)
        i = bases.index(o & ~4095)
        return f"s{sOff+i} offen offset:{o & 4095}"
    e(f"s_lshl_b32 s{sTmp}, s{sPair}, 9")
    e(f"s_mov_b32 s{sC}, {f2u(128 ** -0.5 * math.log2(math.e))}")
    for s in (sQ, sK, sV, sO, sDbg, sWs):
        e(f"s_mov_b32 s{s+3}, 0x20000")
    e(f"s_mov_b32 s{sQ+2}, 16384")
    e(f"s_mov_b32 s{sK+2}, 0x4000000")
    e(f"s_mov_b32 s{sV+2}, 0x4000000")
    e(f"s_mov_b32 s{sO+2}, 16384")
    e(f"s_mov_b32 s{sDbg+2}, 256")
    e(f"s_mov_b32 s{sWs+2}, {0x200000 if a.diag else 0x100000}")
    e(f"s_cmp_eq_u32 s{sWave}, {NW}")
    e("s_waitcnt lgkmcnt(0)")
    g.stamp(1)
    e(f"s_mov_b32 s{sK}, s6");  e(f"s_mov_b32 s{sK+1}, s7")
    e(f"s_mov_b32 s{sQ}, s4");  e(f"s_mov_b32 s{sQ+1}, s5")
    e(f"s_mov_b32 s{sV}, s8");  e(f"s_mov_b32 s{sV+1}, s9")
    e(f"s_mov_b32 s{sO}, s10"); e(f"s_mov_b32 s{sO+1}, s11")
    e(f"s_mov_b32 s{sDbg}, s12"); e(f"s_mov_b32 s{sDbg+1}, s13")
    e(f"s_mov_b32 s{sWs}, s14"); e(f"s_mov_b32 s{sWs+1}, s15")
    e("s_cbranch_scc1 L_helper")
    seq = [("K", j) for j in range(NL)] + [("V", j) for j in range(NL)]
    pos = {x: i for i, x in enumerate(seq)}
    issued = [0]
    def issue_next():
        i = issued[0]
        if i >= len(seq):
            return
        t, j = seq[i]
        r = slot(i)
        if t == "K":
            g.vmem(f"K{j}", f"buffer_load_dwordx4 v[{r}:{r+3}], v{vOffK}, s[{sK}:{sK+3}], {addr(j)}{pol}")
        else:
            g.vmem(f"V{j}", f"buffer_load_dwordx4 v[{r}:{r+3}], v{vOffV}, s[{sV}:{sV+3}], {addr(j)}{pol}")
        issued[0] += 1
    issue_next()
    g.vmem("Q", f"buffer_load_dwordx4 v[{vBqE}:{vBqE+3}], v{vT}, s[{sQ}:{sQ+3}], s{sTmp} offen")
    for i in range(a.d0 - 1):
        issue_next()
    e(f"s_lshl_b32 s4, s{sPair}, 3")
    e(f"s_add_u32 s4, s4, s{sSplit}")
    e("s_lshl_b32 s4, s4, 12")
    e(f"s_lshl_b32 s5, s{sPair}, 2")
    g.c("P-operand lane masks: i'=lane&7 ; mask_r = (i'>>1==r) ? (i'&1 ? 0xffff0000 : 0xffff) : 0")
    e(f"v_and_b32 v{vT}, 1, v{vLane}")
    e(f"v_lshlrev_b32 v{vT}, 4, v{vT}")
    e(f"v_mov_b32 v{vT2}, 0xffff")
    e(f"v_lshlrev_b32 v{vT}, v{vT}, v{vT2}")
    e(f"v_bfe_u32 v{vT2}, v{vLane}, 1, 2")
    for r in range(4):
        e(f"v_cmp_eq_u32 vcc, {r}, v{vT2}")
        e("s_nop 1")
        e(f"v_cndmask_b32 v{vMask+r}, 0, v{vT}, vcc")
    for r in range(4):
        e(f"v_mov_b32 v{vAcc+r}, 0")
    for i in range(D - a.d0):
        issue_next()
    e("s_mov_b32 vcc_lo, 0xf0f0f0f0")
    e("s_mov_b32 vcc_hi, 0xf0f0f0f0")
    g.wait_vm("Q")
    for r in range(4):
        e(f"v_cndmask_b32 v{vBqO+r}, 0, v{vBqE+r}, vcc")
    e("s_not_b64 vcc, vcc")
    for r in range(4):
        e(f"v_cndmask_b32 v{vBqE+r}, 0, v{vBqE+r}, vcc")
    e("s_nop 1")
    def reduce_tile(jj):
        Dt = vD0 if jj % 2 == 0 else vD1
        s = vS + jj
        dpp = lambda u: f"quad_perm:[{u},{u},{u},{u}] row_mask:0xf bank_mask:0xf"
        e(f"v_mov_b32_dpp v{s}, v{Dt} {dpp(0)}")
        for u in range(1, 4):
            e(f"v_add_f32_dpp v{s}, v{Dt+u}, v{s} {dpp(u)}")
        if jj == 1:
            e(f"v_max_f32 v{vM}, v{vS}, v{vS+1}")
        elif jj > 1:
            e(f"v_max_f32 v{vM}, v{vM}, v{s}")
    for jj in range(NS):
        Dt = vD0 if jj % 2 == 0 else vD1
        for x in range(2):
            j = 2 * jj + x
            r = slot(pos[("K", j)])
            g.wait_vm(f"K{j}")
            if j == 0: g.stamp(2)
            if j == NL - 1: g.stamp(3)
            B = vBqE if x == 0 else vBqO
            C = "0" if x == 0 else f"v[{Dt}:{Dt+3}]"
            e(f"v_mfma_f32_16x16x32_bf16 v[{Dt}:{Dt+3}], v[{r}:{r+3}], v[{B}:{B+3}], {C}")
            issue_next()
        if jj > 0:
            e("s_nop 3")
            reduce_tile(jj - 1)
    e("s_nop 7")
    reduce_tile(NS - 1)
    g.c("consumer waves: fetch the count of cleared slots")
    e(f"s_cmp_lg_u32 s{sSplit}, 0")
    e("s_cbranch_scc1 L_nocnt")
    if NW > 4:
        e(f"s_cmp_ge_u32 s{sWave}, 4")
        e("s_cbranch_scc1 L_nocnt")
    e(f"buffer_load_dword v{vCnt}, off, s[{sDbg}:{sDbg+3}], s5 sc1")
    g.label("L_nocnt")
    def allred(op, v):
        e("s_nop 1")
        e(f"v_{op}_f32_dpp v{v}, v{v}, v{v} row_half_mirror row_mask:0xf bank_mask:0xf")
        e(f"v_mov_b32 v{vT}, v{v}")
        e("s_nop 1")
        e(f"v_permlane16_swap_b32 v{v}, v{vT}")
        e(f"v_{op}_f32 v{v}, v{v}, v{vT}")
        e(f"v_mov_b32 v{vT}, v{v}")
        e("s_nop 1")
        e(f"v_permlane32_swap_b32 v{v}, v{vT}")
        e(f"v_{op}_f32 v{v}, v{v}, v{vT}")
    allred("max", vM)
    e(f"v_mul_f32 v{vM}, s{sC}, v{vM}")
    e(f"v_mov_b32 v{vL}, 0")
    def prep_p(k):
        e(f"v_fma_f32 v{vS+k}, v{vS+k}, s{sC}, -v{vM}")
        e(f"v_exp_f32 v{vS+k}, v{vS+k}")
        e("s_nop 0")
        e(f"v_add_f32 v{vL}, v{vL}, v{vS+k}")
        e(f"v_cvt_pk_bf16_f32 v{vS+k}, v{vS+k}, v{vS+k}")
    g.c("LDS address for the O partial: wave*1024 + (lane>>5)*512 + (lane&15)*32 + ((lane>>4)&1)*16")
    def lds_addr():
        e(f"v_lshrrev_b32 v{vOffK}, 5, v{vLane}")
        e(f"v_lshlrev_b32 v{vOffK}, 9, v{vOffK}")
        e(f"v_and_b32 v{vT}, 15, v{vLane}")
        e(f"v_lshl_add_u32 v{vOffK}, v{vT}, 5, v{vOffK}")
        e(f"v_bfe_u32 v{vT}, v{vLane}, 4, 1")
        e(f"v_lshl_add_u32 v{vOffK}, v{vT}, 4, v{vOffK}")
        e(f"s_lshl_b32 s6, s{sWave}, 10")
        e(f"v_add_u32 v{vOffK}, s6, v{vOffK}")
    def publish_ml():
        allred("add", vL)
        g.c("publish (m, l) of this wave to LDS: lanes 0 and 8")
        e(f"v_bfe_u32 v{vT}, v{vLane}, 3, 1")
        e(f"v_mul_u32_u24 v{vT}, {NW*8}, v{vT}")
        e(f"s_lshl_b32 s6, s{sWave}, 3")
        e(f"v_add_u32 v{vT}, s6, v{vT}")
        e("s_mov_b64 exec, 0x101")
        assert vM % 2 == 0 and vL == vM + 1
        e(f"ds_write_b64 v{vT}, v[{vM}:{vL}] offset:{LDS_ML}")
        e("s_mov_b64 exec, -1")
    full = "row_mask:0xf bank_mask:0xf bound_ctrl:0"
    AHEAD = 2
    for k in range(min(AHEAD, NS)):
        prep_p(k)
    for j in range(NL):
        jj, x0 = j // 2, j % 2
        if x0 == 0 and jj + AHEAD < NS:
            prep_p(jj + AHEAD)
        if x0 == 0 and jj + AHEAD == NS:
            publish_ml()
            lds_addr()
        A = vD0 if j % 2 == 0 else vD1
        p = vS + jj
        for r in range(4):
            own = (r >> 1) == x0
            if own:
                e(f"v_and_b32 v{A+r}, v{p}, v{vMask+r}")
            else:
                sh = "row_shr:4" if x0 == 0 else "row_shl:4"
                e(f"v_and_b32_dpp v{A+r}, v{p}, v{vMask+r} {sh} {full}")
        g.wait_vm(f"V{j}")
        if j == NL - 1: g.stamp(4)
        e("s_nop 0")
        r = slot(pos[("V", j)])
        e(f"v_mfma_f32_16x16x32_bf16 v[{vAcc}:{vAcc+3}], v[{A}:{A+3}], v[{r}:{r+3}], v[{vAcc}:{vAcc+3}]")
        issue_next()
    R = vData
    Ow = R + 32
    g.c("addresses for the workgroup combine (waves 0..3: pos = 64*wave + lane, head = wave>>1)")
    e(f"v_and_b32 v{vT}, {NW-1}, v{vLane}")
    e(f"v_lshlrev_b32 v{vT}, 3, v{vT}")
    e(f"s_lshr_b32 s6, s{sWave}, 1")
    e(f"s_mul_i32 s6, s6, {NW*8}")
    e(f"v_add_u32 v{vT}, s6, v{vT}")
    e(f"s_lshl_b32 s6, s{sWave}, 8")
    e(f"v_lshl_add_u32 v{vT2}, v{vLane}, 2, s6")
    e(f"s_lshl_b32 s6, s{sWave}, 10")
    e("s_add_u32 s8, s4, s6")
    e(f"ds_write_b128 v{vOffK}, v[{vAcc}:{vAcc+3}]")
    for s in range(1, NSPLIT):
        e(f"s_add_u32 s{8+s}, s8, {s*4096}")
    def poll_loads():
        for s in range(1, NSPLIT):
            e(f"buffer_load_dwordx4 v[{R+4*s}:{R+4*s+3}], v{vOffV}, s[{sWs}:{sWs+3}], s{8+s} offen sc1")
    g.c("consumer: make sure every producer has marked its slot empty, then start the first fetch")
    e(f"s_cmp_lg_u32 s{sSplit}, 0")
    e("s_cbranch_scc1 L_bar")
    if NW > 4:
        e(f"s_cmp_ge_u32 s{sWave}, 4")
        e("s_cbranch_scc1 L_bar")
    e(f"s_mov_b32 s7, 0x40000")
    g.label("L_cnt")
    e(f"v_readfirstlane_b32 s6, v{vCnt}")
    e(f"s_cmp_ge_u32 s6, {NSPLIT-1}")
    e("s_cbranch_scc1 L_poll0")
    e(f"buffer_load_dword v{vCnt}, off, s[{sDbg}:{sDbg+3}], s5 sc1")
    e("s_sub_u32 s7, s7, 1")
    e("s_cmp_eq_u32 s7, 0")
    e("s_waitcnt vmcnt(0)")
    e("s_cbranch_scc0 L_cnt")
    e("s_mov_b32 s7, 1")
    g.label("L_poll0")
    poll_loads()
    g.label("L_bar")
    e("s_waitcnt lgkmcnt(0)")
    e("s_barrier")
    if NW > 4:
        e(f"s_cmp_ge_u32 s{sWave}, 4")
        e("s_cbranch_scc1 L_fin")
    e(f"ds_read_b64 v[{vM}:{vL}], v{vT} offset:{LDS_ML}")
    for w in range(NW):
        e(f"ds_read_b32 v{Ow+w}, v{vT2} offset:{w*1024}")
    rors = [8, 4, 2, 1] if NW == 16 else ([4, 2, 1] if NW == 8 else [2, 1])
    vMx, vF, vLs, vO = R + 1, vT2, R + 2, R
    e(f"s_waitcnt lgkmcnt({min(NW,15)})")
    e(f"v_max_f32_dpp v{vMx}, v{vM}, v{vM} row_ror:{rors[0]} row_mask:0xf bank_mask:0xf")
    for rr in rors[1:]:
        e("s_nop 1")
        e(f"v_max_f32_dpp v{vMx}, v{vMx}, v{vMx} row_ror:{rr} row_mask:0xf bank_mask:0xf")
    e(f"v_sub_f32 v{vF}, v{vM}, v{vMx}")
    e(f"v_exp_f32 v{vF}, v{vF}")
    e("s_nop 0")
    e(f"v_mul_f32 v{vLs}, v{vL}, v{vF}")
    e("s_waitcnt lgkmcnt(0)")
    e(f"v_mul_f32_dpp v{vO}, v{vF}, v{Ow} row_newbcast:0 row_mask:0xf bank_mask:0xf")
    k = 0
    for w in range(1, NW):
        e(f"v_fmac_f32_dpp v{vO}, v{vF}, v{Ow+w} row_newbcast:{w} row_mask:0xf bank_mask:0xf")
        if w % 2 == 1 and k < len(rors):
            e(f"v_add_f32_dpp v{vLs}, v{vLs}, v{vLs} row_ror:{rors[k]} row_mask:0xf bank_mask:0xf")
            k += 1
    while k < len(rors):
        e("s_nop 1")
        e(f"v_add_f32_dpp v{vLs}, v{vLs}, v{vLs} row_ror:{rors[k]} row_mask:0xf bank_mask:0xf")
        k += 1
    e(f"s_cmp_eq_u32 s{sSplit}, 0")
    e("s_cbranch_scc1 L_check")
    g.c("producer: publish {O, M, L, 0}; keep every word distinct from the empty mark")
    e(f"v_min_u32 v{R}, -2, v{R}")
    e(f"v_min_u32 v{R+1}, -2, v{R+1}")
    e(f"v_min_u32 v{R+2}, -2, v{R+2}")
    e(f"v_mov_b32 v{R+3}, 0")
    e(f"buffer_store_dwordx4 v[{R}:{R+3}], v{vOffV}, s[{sWs}:{sWs+3}], s8 offen sc1")
    e("s_branch L_fin" if a.diag else "s_endpgm")
    g.label("L_poll")
    poll_loads()
    g.label("L_check")
    e("s_sub_u32 s7, s7, 1")
    e("s_waitcnt vmcnt(6)")
    e(f"v_max3_u32 v{vT}, v{R+4}, v{R+5}, v{R+6}")
    for s in range(2, NSPLIT):
        e(f"s_waitcnt vmcnt({NSPLIT-1-s})")
        e(f"v_max3_u32 v{vT}, v{R+4*s}, v{R+4*s+1}, v{vT}")
        e(f"v_max_u32 v{vT}, v{R+4*s+2}, v{vT}")
    e(f"v_cmp_eq_u32 vcc, -1, v{vT}")
    e("s_cmp_eq_u32 s7, 0")
    e("s_cbranch_scc1 L_final")
    e("s_cbranch_vccnz L_poll")
    g.label("L_final")
    e(f"v_max3_f32 v{vM}, v{R+1}, v{R+5}, v{R+9}")
    e(f"v_max3_f32 v{vT}, v{R+13}, v{R+17}, v{R+21}")
    e(f"v_max3_f32 v{vM}, v{R+25}, v{R+29}, v{vM}")
    e(f"v_max_f32 v{vM}, v{vM}, v{vT}")
    for s in range(NSPLIT):
        e(f"v_sub_f32 v{R+4*s+1}, v{R+4*s+1}, v{vM}")
    for s in range(NSPLIT):
        e(f"v_exp_f32 v{R+4*s+1}, v{R+4*s+1}")
    e("s_nop 0")
    e(f"v_mul_f32 v{vL}, v{R+1}, v{R+2}")
    e(f"v_mul_f32 v{vT}, v{R+1}, v{R}")
    for s in range(1, NSPLIT):
        e(f"v_fmac_f32 v{vL}, v{R+4*s+1}, v{R+4*s+2}")
        e(f"v_fmac_f32 v{vT}, v{R+4*s+1}, v{R+4*s}")
    e(f"v_rcp_f32 v{vL}, v{vL}")
    e(f"s_lshl_b32 s6, s{sWave}, 7")
    e(f"s_add_u32 s6, s6, s{sTmp}")
    e(f"v_lshlrev_b32 v{vT2}, 1, v{vLane}")
    e(f"v_mul_f32 v{vT}, v{vT}, v{vL}")
    e(f"v_cvt_pk_bf16_f32 v{vT}, v{vT}, v{vT}")
    e(f"buffer_store_short v{vT}, v{vT2}, s[{sO}:{sO+3}], s6 offen")
    e("s_branch L_fin" if a.diag else "s_endpgm")
    g.label("L_helper")
    g.c("helper wave of a producer workgroup: mark the hand-off slot empty, then count")
    if a.diag:
        for i in (2, 3, 4):
            e(f"s_mov_b32 s{80+2*i}, s80")
    e(f"s_cmp_eq_u32 s{sSplit}, 0")
    e("s_cbranch_scc1 L_fin")
    e(f"s_lshl_b32 s4, s{sPair}, 3")
    e(f"s_add_u32 s4, s4, s{sSplit}")
    e("s_lshl_b32 s4, s4, 12")
    e(f"s_lshl_b32 s5, s{sPair}, 2")
    for r in range(4):
        e(f"v_mov_b32 v{vD0+r}, -1")
    e(f"v_mov_b32 v{vD1}, 1")
    for r in range(4):
        e(f"buffer_store_dwordx4 v[{vD0}:{vD0+3}], v{vOffV}, s[{sWs}:{sWs+3}], s4 offen offset:{r*1024} sc1")
    e("s_waitcnt vmcnt(0)")
    e("s_mov_b64 exec, 1")
    e(f"buffer_atomic_add v{vD1}, off, s[{sDbg}:{sDbg+3}], s5")
    e("s_mov_b64 exec, -1")
    g.label("L_fin")
    g.dump(sWave, NWT, sWs)
    g.label("L_end")
    e("s_endpgm")

    out += g.lines
    nfv = vtop
    out.append('.section .rodata,"a"')
    out.append(".p2align 6")
    out.append(f".amdhsa_kernel {name}")
    out.append(f"  .amdhsa_next_free_vgpr {nfv}")
    out.append(f"  .amdhsa_next_free_sgpr {96 if a.diag else 80}")
    out.append(f"  .amdhsa_accum_offset {(nfv + 3)//4*4}")
    out.append("  .amdhsa_group_segment_fixed_size 0")
    out.append("  .amdhsa_kernarg_size 48")
    out.append("  .amdhsa_user_sgpr_count 2")
    out.append("  .amdhsa_user_sgpr_kernarg_segment_ptr 1")
    out.append("  .amdhsa_system_sgpr_workgroup_id_x 1")
    out.append("  .amdhsa_float_denorm_mode_32 3")
    out.append(".end_amdhsa_kernel")
    return "\n".join(out) + "\n"

if __name__ == "__main__":
    ap = argparse.ArgumentParser()
    ap.add_argument("--nw", type=int, default=4)
    ap.add_argument("--pol", default="nt")
    ap.add_argument("--map", type=int, default=0)
    ap.add_argument("--inter", type=int, default=4)
    ap.add_argument("--joint", type=int, default=0)
    ap.add_argument("--diag", type=int, default=0)
    ap.add_argument("--depth", type=int, default=24)
    ap.add_argument("--d0", type=int, default=8)
    ap.add_argument("--lds", type=int, default=83968)
    ap.add_argument("-o", default="standalone__gqa_softmax__decode.s")
    a = ap.parse_args()
    a.pol = (" " + a.pol.replace("+", " ")) if a.pol and a.pol != "none" else ""
    open(a.o, "w").write(gen(a))
```
